```python
import torch

def _softmax(x, axis=-1):
    return torch.softmax(x, dim=axis)
def _gelu(x):
    return torch.nn.functional.gelu(x, approximate="tanh")
def _silu(x):
    return torch.nn.functional.silu(x)
def _sigmoid(x):
    return torch.sigmoid(x)
def _layernorm(x, axis=-1, eps=1e-5):
    m = x.mean(dim=axis, keepdim=True)
    v = x.var(dim=axis, keepdim=True, unbiased=False)
    return (x - m) / torch.sqrt(v + eps)
def _scatter_add(tgt, idx, src, axis=0):
    return tgt.clone().index_add_(axis, idx, src)
def _segment_sum(src, seg, n):
    out = torch.zeros((n,) + src.shape[1:], dtype=src.dtype)
    return out.index_add_(0, seg, src)
def _pad(x, pw):
    flat = tuple(v for pair in reversed(pw) for v in pair)
    return torch.nn.functional.pad(x, flat)

kernel_name = 'concat_heads__gqa_block_cached__gqa_block_cached__near_ridge'

def setup_inputs():

    _w = (lambda a: (lambda t: t.to(torch.bfloat16) if t.is_floating_point() else t)(torch.as_tensor(a)))
    def _A_setup():
        B, Sq, D = 8, 144, 640
        Hq, Hkv, Sk, Dh = 32, 32, 1024, 128
        assert Hq % Hkv == 0, (Hq, Hkv)
        return {
            "x": _w((lambda *s: torch.randn(*s, dtype=torch.bfloat16) * 0.8)(B, Sq, D)),
            "k_cache": _w((lambda *s: torch.randn(*s, dtype=torch.bfloat16) * 0.8)(B, Hkv, Sk, Dh)),
            "v_cache": _w((lambda *s: torch.randn(*s, dtype=torch.bfloat16) * 0.05)(B, Hkv, Sk, Dh)),
            "wq": _w((lambda *s: torch.randn(*s, dtype=torch.bfloat16) * 0.8)(D, Hq * Dh) * (D ** -0.5)),
            "wo": _w((lambda *s: torch.randn(*s, dtype=torch.bfloat16) * 0.05)(Hq * Dh, D) * ((Hq * Dh) ** -0.5)),
        }
    _A_in = _A_setup()

    def _B_setup():
        B, Sq, D = 8, 144, 640
        Hq, Hkv, Sk, Dh = 32, 32, 1024, 128
        assert Hq % Hkv == 0, (Hq, Hkv)
        return {
            "x": _w((lambda *s: torch.randn(*s, dtype=torch.bfloat16) * 0.8)(B, Sq, D)),
            "k_cache": _w((lambda *s: torch.randn(*s, dtype=torch.bfloat16) * 0.8)(B, Hkv, Sk, Dh)),
            "v_cache": _w((lambda *s: torch.randn(*s, dtype=torch.bfloat16) * 0.05)(B, Hkv, Sk, Dh)),
            "wq": _w((lambda *s: torch.randn(*s, dtype=torch.bfloat16) * 0.8)(D, Hq * Dh) * (D ** -0.5)),
            "wo": _w((lambda *s: torch.randn(*s, dtype=torch.bfloat16) * 0.05)(Hq * Dh, D) * ((Hq * Dh) ** -0.5)),
        }
    _B_in = _B_setup()

    return {
        "A_x": _A_in["x"],
        "A_k_cache": _A_in["k_cache"],
        "A_v_cache": _A_in["v_cache"],
        "A_wq": _A_in["wq"],
        "A_wo": _A_in["wo"],
        "B_x": _B_in["x"],
        "B_k_cache": _B_in["k_cache"],
        "B_v_cache": _B_in["v_cache"],
        "B_wq": _B_in["wq"],
        "B_wo": _B_in["wo"],
    }

def reference(A_x, A_k_cache, A_v_cache, A_wq, A_wo, B_x, B_k_cache, B_v_cache, B_wq, B_wo):
    def _A_ref(x, k_cache, v_cache, wq, wo):
        B, Sq, D = x.shape
        Hq, Dh = 32, 128
        Hkv = k_cache.shape[1]
        rep = Hq // Hkv
        q = (lambda x, *d: x.permute(*d))((x @ wq).reshape(B, Sq, Hq, Dh), 0, 2, 1, 3)
        k = (lambda x, n, axis: torch.repeat_interleave(x, n, dim=axis))(k_cache, rep, axis=1)
        v = (lambda x, n, axis: torch.repeat_interleave(x, n, dim=axis))(v_cache, rep, axis=1)
        scores = torch.einsum("bhqd,bhkd->bhqk", q, k) * (Dh ** -0.5)
        p = _softmax(scores, axis=-1)
        o = torch.einsum("bhqk,bhkd->bhqd", p, v)
        return (lambda x, *d: x.permute(*d))(o, 0, 2, 1, 3).reshape(B, Sq, Hq * Dh) @ wo

    def _B_ref(x, k_cache, v_cache, wq, wo):
        B, Sq, D = x.shape
        Hq, Dh = 32, 128
        Hkv = k_cache.shape[1]
        rep = Hq // Hkv
        q = (lambda x, *d: x.permute(*d))((x @ wq).reshape(B, Sq, Hq, Dh), 0, 2, 1, 3)
        k = (lambda x, n, axis: torch.repeat_interleave(x, n, dim=axis))(k_cache, rep, axis=1)
        v = (lambda x, n, axis: torch.repeat_interleave(x, n, dim=axis))(v_cache, rep, axis=1)
        scores = torch.einsum("bhqd,bhkd->bhqk", q, k) * (Dh ** -0.5)
        p = _softmax(scores, axis=-1)
        o = torch.einsum("bhqk,bhkd->bhqd", p, v)
        return (lambda x, *d: x.permute(*d))(o, 0, 2, 1, 3).reshape(B, Sq, Hq * Dh) @ wo

    a = _A_ref(A_x, A_k_cache, A_v_cache, A_wq, A_wo)
    b = _B_ref(B_x, B_k_cache, B_v_cache, B_wq, B_wo)
    return torch.concatenate([a, b], axis=-1)
```

```python
KNAME = "concat_heads__gqa_block_cached__gqa_block_cached__near_ridge_kernel"

HEADER = """; Kernarg layout (104 bytes, ptrs only, base s[0:1]):
"""

class Asm:
    def __init__(self):
        self.lines = []
        self.uid = 0
    def __call__(self, s):
        for l in s.split("\n"):
            l = l.strip()
            if l:
                self.lines.append("    " + l if not l.endswith(":") else l)
    def label(self, name):
        self.lines.append(name + ":")
    def newlabel(self, p="L"):
        self.uid += 1
        return f"{p}_{self.uid}"
    def comment(self, s):
        self.lines.append("    ; " + s)
    def text(self):
        return "\n".join(self.lines) + "\n"

def kernel_file(kernels, launches):
    out = HEADER
    if len(launches) == 1 and launches[0][0] == KNAME:
        n, g, b, lds = launches[0]
        out += f"; @launch grid=({g},1,1) block=({b},1,1) lds={lds}\n"
    else:
        for n, g, b, lds in launches:
            out += f"; @launch kernel={n} grid=({g},1,1) block=({b},1,1) lds={lds}\n"
    out += '.amdgcn_target "amdgcn-amd-amdhsa--gfx950"\n.text\n'
    for name, body, nv, ns, ao in kernels:
        out += f".globl {name}\n.p2align 8\n.type {name},@function\n{name}:\n{body}"
    out += '.section .rodata,"a"\n'
    for name, body, nv, ns, ao in kernels:
        out += f""".p2align 6
.amdhsa_kernel {name}
  .amdhsa_next_free_vgpr {nv}
  .amdhsa_next_free_sgpr {ns}
  .amdhsa_accum_offset {ao}
  .amdhsa_group_segment_fixed_size 0
  .amdhsa_kernarg_size 104
  .amdhsa_user_sgpr_count 2
  .amdhsa_user_sgpr_kernarg_segment_ptr 1
  .amdhsa_system_sgpr_workgroup_id_x 1
.end_amdhsa_kernel
"""
    return out

def srd(a, d, lo, hi, nbytes):
    a(f"""s_mov_b32 s{d}, s{lo}
    s_and_b32 s{d+1}, s{hi}, 0xffff
    s_mov_b32 s{d+2}, {nbytes}
    s_mov_b32 s{d+3}, 0x20000""")
```

```python
import sys
from asmlib import *

TILE = 8448
NK, NV, NS = 6, 5, 5
KR = 0
VR = NK * TILE
ST = (NK + NV) * TILE
STN = 7
QB = ST + STN * TILE - 144 * 272
LDS1 = ST + STN * TILE
assert LDS1 <= 163840
QSCALE = 0.12751743
import struct
def f2u(x): return struct.unpack("<I", struct.pack("<f", x))[0]
import math
QSCALE_U = f2u(math.log2(math.e) / math.sqrt(128.0))
THR_U = f2u(65536.0)
OOB = 0x7f000000

class Q:
    def __init__(self, a, name, maxv):
        self.a, self.name, self.maxv = a, name, maxv
        self.q = []
    def push(self, tag): self.q.append(tag)
    def need(self, tag):
        idx = [i for i, t in enumerate(self.q) if t == tag]
        if not idx: return
        n = len(self.q) - 1 - idx[-1]
        n = min(n, self.maxv)
        self.a(f"s_waitcnt {self.name}({n})")
        self.q = self.q[len(self.q) - n:] if n else []
    def drain(self):
        self.a(f"s_waitcnt {self.name}(0)")
        self.q = []

def vr(b, n): return f"v[{b}:{b+n-1}]"

SRD_X, SRD_K, SRD_V, SRD_WQ, SRD_OW = 4, 8, 12, 16, 20
sH0, sB, sBR = 24, 25, 26
sRound = 27
sKs, sVs = 28, 29
sCnt = 30
sThr = 31
sT0, sT1, sT2, sT3 = 32, 33, 34, 35
sOoff = 36
sKg, sVg, sKn, sVn, sKw, sVw = 40, 41, 42, 43, 44, 45
sWrow = 46
sWlds = 49
sWg = 52
sMode = 53
sIt = 54
sXk = 55

def common_setup(a):
    a(f"""
    s_cmp_ge_u32 s2, 256
    s_cbranch_scc1 L_end
    s_load_dwordx8 s[56:63], s[0:1], 0
    s_load_dwordx8 s[64:71], s[0:1], 40
    s_load_dwordx2 s[72:73], s[0:1], 96
    v_lshrrev_b32 v1, 6, v0
    v_and_b32 v0, 63, v0
    v_readfirstlane_b32 s3, v1
    s_and_b32 s{sT0}, s2, 7            ; xcd j
    s_lshr_b32 s{sT1}, s2, 3           ; c
    s_lshr_b32 s{sBR}, s{sT0}, 2
    s_and_b32 s{sB}, s{sT0}, 3
    s_lshl_b32 s{sB}, s{sB}, 1
    s_lshr_b32 s{sT2}, s{sT1}, 4
    s_add_u32 s{sB}, s{sB}, s{sT2}
    s_and_b32 s{sH0}, s{sT1}, 15
    s_mov_b32 s{sThr}, {THR_U:#x}
    s_mov_b32 s{sRound}, 0
    s_waitcnt lgkmcnt(0)
    s_cmp_eq_u32 s{sBR}, 0
    s_cselect_b32 s56, s56, s64
    s_cselect_b32 s57, s57, s65
    s_cselect_b32 s58, s58, s66
    s_cselect_b32 s59, s59, s67
    s_cselect_b32 s60, s60, s68
    s_cselect_b32 s61, s61, s69
    s_cselect_b32 s62, s62, s70
    s_cselect_b32 s63, s63, s71
    s_mul_i32 s{sT0}, s{sB}, 184320
    s_add_u32 s56, s56, s{sT0}
    s_addc_u32 s57, s57, 0
    """)
    srd(a, SRD_X, 56, 57, 184320)
    srd(a, SRD_K, 58, 59, 0x4000000)
    srd(a, SRD_V, 60, 61, 0x4000000)
    srd(a, SRD_WQ, 62, 63, 5242880)
    srd(a, SRD_OW, 72, 73, 2 * 8 * 32 * 36864)
    a(f"""
    s_lshl_b32 s{sT0}, s{sBR}, 3
    s_add_u32 s{sT0}, s{sT0}, s{sB}
    s_lshl_b32 s{sT0}, s{sT0}, 5
    s_add_u32 s{sT0}, s{sT0}, s{sH0}
    s_mul_i32 s{sOoff}, s{sT0}, 36864
    s_mov_b32 s{sKs}, {KR}
    s_mov_b32 s{sVs}, {VR}
    s_cmp_lt_u32 s3, 4
    s_cbranch_scc1 L_main
    s_cmp_lt_u32 s3, 7
    s_cbranch_scc1 L_help
    s_branch L_rem
    """)

NPRO = 22

def adv_slot(a, s, base, n):
    a(f"""s_add_u32 s{s}, s{s}, {TILE}
    s_cmp_eq_u32 s{s}, {base + n * TILE}
    s_cselect_b32 s{s}, {base}, s{s}""")

class Attn:
    def __init__(self, a, big):
        self.a = a; self.big = big
        self.lq = Q(a, "lgkmcnt", 15)
        self.rare = []
        if big:
            self.nS = 16; self.nO = 64; self.nC = 16; self.nQ = 32
        else:
            self.nS = 8; self.nO = 32; self.nC = 4; self.nQ = 16
        self.vKl, self.vVl, self.vKa, self.vVa, self.vL, self.vTs, self.vM, self.vM2, self.vOa, self.vQa = 2, 3, 4, 5, 6, 7, 8, 9, 10, 11
        b = 16
        self.vQ = b; b += self.nQ
        self.vO = b; b += self.nO
        self.vS = [b, b + self.nS]; b += 2 * self.nS
        self.vC = b; b += self.nC
        self.vP = [b, b + self.nS // 2]; b += self.nS
        self.vF = b; b += 32
        self.vT = b; b += 8
        self.top = b
        self.pfx = "M" if big else "R"
        self.hook = None

    def setup(self):
        a = self.a
        if self.big:
            a(f"""
            v_and_b32 v12, 15, v0
            v_lshrrev_b32 v12, 1, v12
            v_mul_u32_u24 v{self.vKl}, 1056, v12
            v_and_b32 v12, 1, v0
            v_lshl_add_u32 v{self.vKl}, v12, 8, v{self.vKl}
            v_bfe_u32 v13, v0, 4, 1
            v_lshl_add_u32 v{self.vKl}, v13, 9, v{self.vKl}
            v_lshrrev_b32 v13, 5, v0
            v_xor_b32 v12, v12, v13
            v_lshl_add_u32 v{self.vKl}, v12, 4, v{self.vKl}
            """)
            a(f"""
            v_bfe_u32 v12, v0, 2, 2
            v_lshlrev_b32 v12, 1, v12
            v_add_u32 v12, v12, v13
            v_mul_u32_u24 v{self.vVl}, 1056, v12
            v_bfe_u32 v12, v0, 4, 1
            v_lshl_add_u32 v{self.vVl}, v12, 5, v{self.vVl}
            v_and_b32 v12, 3, v0
            v_lshl_add_u32 v{self.vVl}, v12, 3, v{self.vVl}
            """)
            a(f"""
            v_and_b32 v12, 31, v0
            s_lshl_b32 s{sT0}, s3, 5
            v_add_u32 v14, s{sT0}, v12
            v_mul_u32_u24 v{self.vQa}, 272, v14
            v_lshl_add_u32 v{self.vQa}, v13, 4, v{self.vQa}
            v_add_u32 v{self.vQa}, {QB}, v{self.vQa}
            v_lshlrev_b32 v{self.vOa}, 5, v14
            v_lshl_add_u32 v{self.vOa}, v13, 4, v{self.vOa}
            """)
        else:
            a(f"""
            v_and_b32 v12, 15, v0
            v_lshrrev_b32 v12, 1, v12
            v_mul_u32_u24 v{self.vKl}, 1056, v12
            v_and_b32 v12, 1, v0
            v_lshl_add_u32 v{self.vKl}, v12, 8, v{self.vKl}
            v_lshrrev_b32 v13, 4, v0
            v_xor_b32 v12, v12, v13
            v_lshl_add_u32 v{self.vKl}, v12, 4, v{self.vKl}
            """)
            a(f"""
            v_bfe_u32 v12, v0, 2, 2
            v_lshlrev_b32 v12, 1, v12
            v_bfe_u32 v14, v0, 4, 1
            v_add_u32 v12, v12, v14
            v_mul_u32_u24 v{self.vVl}, 1056, v12
            v_lshrrev_b32 v12, 5, v0
            v_lshl_add_u32 v{self.vVl}, v12, 8, v{self.vVl}
            v_and_b32 v12, 3, v0
            v_lshl_add_u32 v{self.vVl}, v12, 3, v{self.vVl}
            """)
            a(f"""
            v_and_b32 v12, 15, v0
            v_add_u32 v14, 128, v12
            v_mul_u32_u24 v{self.vQa}, 272, v14
            v_lshl_add_u32 v{self.vQa}, v13, 4, v{self.vQa}
            v_add_u32 v{self.vQa}, {QB}, v{self.vQa}
            v_lshlrev_b32 v{self.vOa}, 5, v14
            v_lshl_add_u32 v{self.vOa}, v13, 3, v{self.vOa}
            """)

    def rdK(self, i):
        off = i * 32 if self.big else (i >> 2) * 512 + (i & 3) * 64
        self.a(f"ds_read_b128 {vr(self.vF + 4 * i, 4)}, v{self.vKa} offset:{off}")
        self.lq.push(("K", i))
    def rdV(self, i):
        for e in range(2):
            if self.big:
                t, blk = i >> 2, i & 3
                off = (2 * t + e) * 256 + blk * 64
            else:
                off = e * 512 + i * 32
            self.a(f"ds_read_b64_tr_b16 {vr(self.vF + 4 * i + 2 * e, 2)}, v{self.vVa} offset:{off}")
            self.lq.push(("V", i))
    def qk(self, i, S, first_zero=False):
        self.lq.need(("K", i))
        F = vr(self.vF + 4 * i, 4)
        if self.big:
            D = vr(S, 16); C = D if i else ("0" if first_zero else vr(self.vC, 16))
            self.a(f"v_mfma_f32_32x32x16_bf16 {D}, {F}, {vr(self.vQ + 4 * i, 4)}, {C}")
        else:
            kt, s = i >> 2, i & 3
            D = vr(S + 4 * kt, 4); C = D if s else ("0" if first_zero else vr(self.vC, 4))
            self.a(f"v_mfma_f32_16x16x32_bf16 {D}, {F}, {vr(self.vQ + 4 * s, 4)}, {C}")
    def pv(self, i, P):
        self.lq.need(("V", i))
        F = vr(self.vF + 4 * i, 4)
        if self.big:
            t, blk = i >> 2, i & 3
            D = vr(self.vO + 16 * blk, 16)
            self.a(f"v_mfma_f32_32x32x16_bf16 {D}, {F}, {vr(P + 4 * t, 4)}, {D}")
        else:
            D = vr(self.vO + 4 * i, 4)
            self.a(f"v_mfma_f32_16x16x32_bf16 {D}, {F}, {vr(P, 4)}, {D}")
    def sm_ops(self, S, P):
        ops = []
        n = self.nS // 2
        T = self.vT
        for i in range(n):
            t0, t1 = T + 2 * (i % 4), T + 2 * (i % 4) + 1
            ops.append(("e", f"v_exp_f32 v{t0}, v{S + 2 * i}"))
            ops.append(("e", f"v_exp_f32 v{t1}, v{S + 2 * i + 1}"))
        res = []
        for i in range(n + 1):
            if i < n:
                res += ops[2 * i: 2 * i + 2]
            if i >= 1:
                j = i - 1
                t0, t1 = T + 2 * (j % 4), T + 2 * (j % 4) + 1
                if j == 0:
                    res.append(("p", f"v_add_f32 v{self.vTs}, v{t0}, v{t1}"))
                else:
                    res.append(("p", f"v_add_f32 v{self.vTs}, v{self.vTs}, v{t0}"))
                    res.append(("p", f"v_add_f32 v{self.vTs}, v{self.vTs}, v{t1}"))
                res.append(("p", f"v_cvt_pk_bf16_f32 v{P + j}, v{t0}, v{t1}"))
        return res
    def allmax(self, S):
        a = self.a; M, M2 = self.vM, self.vM2
        a(f"v_max3_f32 v{M}, v{S}, v{S+1}, v{S+2}")
        i = 3
        while i + 1 < self.nS:
            a(f"v_max3_f32 v{M}, v{M}, v{S+i}, v{S+i+1}"); i += 2
        if i < self.nS:
            a(f"v_max_f32 v{M}, v{M}, v{S+i}")
        self.xlane(M, M2, "v_max_f32")
    def xlane(self, M, M2, op):
        a = self.a
        if not self.big:
            a(f"v_mov_b32 v{M2}, v{M}\ns_nop 1\nv_permlane16_swap_b32 v{M}, v{M2}\ns_nop 1\n{op} v{M}, v{M}, v{M2}")
        a(f"v_mov_b32 v{M2}, v{M}\ns_nop 1\nv_permlane32_swap_b32 v{M}, v{M2}\ns_nop 1\n{op} v{M}, v{M}, v{M2}")

    def check(self, p, has_next):
        a = self.a
        lr = a.newlabel(self.pfx + "rare"); lb = a.newlabel(self.pfx + "back")
        a(f"v_cmp_nge_f32 vcc, s{sThr}, v{self.vTs}")
        a(f"s_cbranch_vccnz {lr}")
        a.label(lb)
        a(f"v_add_f32 v{self.vL}, v{self.vL}, v{self.vTs}")
        self.rare.append((lr, lb, p, has_next))

    def emit_rare(self):
        a = self.a
        for lr, lb, p, has_next in self.rare:
            S, Sn, P = self.vS[p], self.vS[1 - p], self.vP[p]
            a.label(lr)
            a("s_nop 15\ns_nop 7")
            self.allmax(S)
            M, M2 = self.vM, self.vM2
            a(f"v_max_f32 v{M}, 0, v{M}")
            a(f"v_sub_f32 v{M2}, 0, v{M}\nv_exp_f32 v{M2}, v{M2}\ns_nop 0")
            for i in range(self.nO): a(f"v_mul_f32 v{self.vO+i}, v{self.vO+i}, v{M2}")
            a(f"v_mul_f32 v{self.vL}, v{self.vL}, v{M2}")
            for i in range(self.nC): a(f"v_sub_f32 v{self.vC+i}, v{self.vC+i}, v{M}")
            for i in range(self.nS): a(f"v_sub_f32 v{S+i}, v{S+i}, v{M}")
            if has_next:
                for i in range(self.nS): a(f"v_sub_f32 v{Sn+i}, v{Sn+i}, v{M}")
            for k, ins in self.sm_ops(S, P):
                a(ins)
                if k == "e": a("s_nop 0")
            a(f"s_nop 1\ns_branch {lb}")
        self.rare = []

    def setK(self):
        self.a(f"v_add_u32 v{self.vKa}, s{sKs}, v{self.vKl}")
        adv_slot(self.a, sKs, KR, NK)
    def setV(self):
        self.a(f"v_add_u32 v{self.vVa}, s{sVs}, v{self.vVl}")
        adv_slot(self.a, sVs, VR, NV)

    def H(self, kind):
        if self.hook: self.hook(kind)

    def stepA(self):
        a = self.a
        self.H("begin")
        for s in range(self.nQ // 4):
            off = s * 32 if self.big else s * 64
            a(f"ds_read_b128 {vr(self.vQ + 4 * s, 4)}, v{self.vQa} offset:{off}")
            self.lq.push(("Q", 0))
        self.setK()
        for i in range(8): self.rdK(i)
        self.setK()
        for i in range(self.nO): a(f"v_mov_b32 v{self.vO+i}, 0")
        a(f"v_mov_b32 v{self.vL}, 0")
        for i in range(8):
            self.qk(i, self.vS[0], first_zero=True)
            self.rdK(i)
        a("s_nop 15")
        S = self.vS[0]
        self.allmax(S)
        a(f"v_sub_f32 v{self.vC}, 0, v{self.vM}")
        for i in range(1, self.nC): a(f"v_mov_b32 v{self.vC+i}, v{self.vC}")
        for i in range(self.nS): a(f"v_sub_f32 v{S+i}, v{S+i}, v{self.vM}")
        self.H("end")
        a("s_barrier")

    def step(self, p, do_qk, do_pv, do_sm, rd_k):
        a = self.a
        self.H("begin")
        S, Sn, P, Pp = self.vS[p], self.vS[1 - p], self.vP[p], self.vP[1 - p]
        ops = self.sm_ops(S, P) if do_sm else []
        nslots = (8 if do_qk else 0) + (8 if do_pv else 0)
        cost = lambda o: 2 if o[0] == "e" else 1
        tot = sum(cost(o) for o in ops)
        st = {"i": 0, "used": 0, "slot": 0}
        def fill():
            st["slot"] += 1
            target = tot * st["slot"] / nslots
            while st["i"] < len(ops) and st["used"] + cost(ops[st["i"]]) / 2 <= target:
                a(ops[st["i"]][1]); st["used"] += cost(ops[st["i"]]); st["i"] += 1
        if do_pv: self.setV()
        if rd_k: self.setK()
        if do_qk:
            for i in range(8):
                self.qk(i, Sn)
                if do_pv: self.rdV(i)
                elif rd_k: self.rdK(i)
                fill()
        elif do_pv:
            for i in range(8): self.rdV(i)
        if do_pv:
            for i in range(8):
                self.pv(i, Pp)
                if rd_k: self.rdK(i)
                fill()
        while st["i"] < len(ops):
            a(ops[st["i"]][1]); st["i"] += 1
        if do_sm: self.check(p, do_qk)

    def epilogue(self):
        a = self.a
        a("s_nop 15")
        L, M2 = self.vL, self.vM2
        self.xlane(L, M2, "v_add_f32")
        a(f"v_rcp_f32 v{L}, v{L}\ns_nop 0")
        for i in range(self.nO): a(f"v_mul_f32 v{self.vO+i}, v{self.vO+i}, v{L}")
        if self.big:
            for u in range(8):
                o = self.vO + 8 * u; d = self.vF + 4 * (u % 8)
                for j in range(4): a(f"v_cvt_pk_bf16_f32 v{d+j}, v{o+2*j}, v{o+2*j+1}")
                a(f"s_add_u32 s{sT0}, s{sOoff}, {u * 4608}\ns_nop 0")
                a(f"v_permlane32_swap_b32 v{d}, v{d+2}\nv_permlane32_swap_b32 v{d+1}, v{d+3}")
                a(f"buffer_store_dwordx4 {vr(d,4)}, v{self.vOa}, s[{SRD_OW}:{SRD_OW+3}], s{sT0} offen")
        else:
            for u in range(8):
                o = self.vO + 4 * u; d = self.vF + 2 * u
                for j in range(2): a(f"v_cvt_pk_bf16_f32 v{d+j}, v{o+2*j}, v{o+2*j+1}")
                a(f"s_add_u32 s{sT0}, s{sOoff}, {u * 4608}")
                a(f"buffer_store_dwordx2 {vr(d,2)}, v{self.vOa}, s[{SRD_OW}:{SRD_OW+3}], s{sT0} offen")
                self.H("store")

    def round_code(self):
        a = self.a; pf = self.pfx
        a.label(f"{pf}_round")
        self.lq.q = []
        self.stepA()
        self.step(0, True, False, True, True); self.H("end"); a("s_barrier")
        a(f"s_mov_b32 s{sCnt}, 15")
        entry = list(self.lq.q)
        a.label(f"{pf}_loop")
        self.H("loop")
        self.step(1, True, True, True, True); self.H("end"); a("s_barrier")
        self.step(0, True, True, True, True); self.H("end")
        a(f"s_sub_u32 s{sCnt}, s{sCnt}, 1\ns_cmp_lg_u32 s{sCnt}, 0\ns_barrier\ns_cbranch_scc1 {pf}_loop")
        assert self.lq.q == entry, (self.lq.q, entry)
        self.H("endloop")
        self.step(1, False, True, True, False); self.H("end"); a("s_barrier")
        self.step(0, False, True, False, False)
        self.epilogue(); self.H("end")
        a(f"""
        s_mov_b32 s{sKs}, {KR + (32 % NK) * TILE}
        s_mov_b32 s{sVs}, {VR + (32 % NV) * TILE}
        s_add_u32 s{sOoff}, s{sOoff}, {16 * 36864}
        s_add_u32 s{sRound}, s{sRound}, 1
        s_cmp_lt_u32 s{sRound}, 2
        s_barrier
        s_cbranch_scc1 {pf}_round
        s_waitcnt vmcnt(0)
        s_endpgm
        """)
        self.emit_rare()

def barrier_loop(a, n, lbl):
    a(f"s_mov_b32 s{sCnt}, {n}")
    a.label(lbl)
    a(f"s_sub_u32 s{sCnt}, s{sCnt}, 1\ns_cmp_lg_u32 s{sCnt}, 0\ns_barrier\ns_cbranch_scc1 {lbl}")

class Loader:
    vKo, vVo = 14, 15
    def __init__(self, a, nt=True):
        self.a = a; self.fl = " nt" if nt else ""
        self.stepno = 0
    def setup(self):
        a = self.a
        a(f"""
        v_bfe_u32 v12, v0, 4, 1
        v_lshrrev_b32 v13, 5, v0
        v_lshlrev_b32 v{self.vKo}, 8, v12
        v_lshl_add_u32 v{self.vKo}, v13, 12, v{self.vKo}
        v_and_b32 v13, 15, v0
        v_xor_b32 v12, v12, v13
        v_lshl_add_u32 v{self.vKo}, v12, 4, v{self.vKo}
        v_lshrrev_b32 v12, 4, v0
        v_lshlrev_b32 v{self.vVo}, 11, v12
        v_lshl_add_u32 v{self.vVo}, v13, 4, v{self.vVo}
        s_lshl_b32 s{sT0}, s{sB}, 5
        s_add_u32 s{sT0}, s{sT0}, s{sH0}
        s_lshl_b32 s{sKg}, s{sT0}, 18
        s_mov_b32 s{sVg}, s{sKg}
        s_mov_b32 s{sKn}, 0
        s_mov_b32 s{sVn}, 0
        s_mov_b32 s{sKw}, {KR}
        s_mov_b32 s{sVw}, {VR}
        """)
    def adv(self, g, n, w, base, cnt):
        self.a(f"""
        s_add_u32 s{n}, s{n}, 1
        s_cmp_eq_u32 s{n}, 32
        s_cselect_b32 s{sT1}, {15 * 262144}, 0
        s_add_u32 s{g}, s{g}, s{sT1}
        s_add_u32 s{g}, s{g}, 8192
        s_cmp_ge_u32 s{n}, 64
        s_cselect_b32 s{g}, {OOB}, s{g}
        """)
        adv_slot(self.a, w, base, cnt)
    def issueK(self):
        self.a("s_waitcnt vmcnt(55)")
        for b in range(8):
            self.a(f"s_add_u32 m0, s{sKw}, {b * 544}\ns_nop 0")
            self.a(f"buffer_load_dwordx4 v{self.vKo}, s[{SRD_K}:{SRD_K+3}], s{sKg} offen offset:{b * 512}{self.fl} lds")
        self.adv(sKg, sKn, sKw, KR, NK)
    def issueV(self):
        self.a("s_waitcnt vmcnt(55)")
        for i in range(8):
            p = 2 * (i & 3) + (i >> 2)
            self.a(f"s_add_u32 m0, s{sVw}, {p * 1056 - i * 256}\ns_nop 0")
            self.a(f"buffer_load_dwordx4 v{self.vVo}, s[{SRD_V}:{SRD_V+3}], s{sVg} offen offset:{i * 256}{self.fl} lds")
        self.adv(sVg, sVn, sVw, VR, NV)

def loader_schedule():
    seq = []
    def push(t, n=8): seq.extend([t] * n)
    order = []
    k = v = 0
    pro = ["K", "K"] + ["V", "K"] * (NK - 2) + ["V"] * (NV - (NK - 2))
    for c in pro:
        if c == "K": push(("K", k)); k += 1
        else: push(("V", v)); v += 1
    def allowed(tags):
        last = max((i for i, t in enumerate(seq) if t in tags), default=-1)
        return len(seq) - 1 - last
    waits = {}
    pro_wait = allowed({("K", 0), ("K", 1)})
    for r in range(2):
        for s in range(34):
            nk = 2 if s == 2 else (1 if 3 <= s <= 32 else 0)
            nv = 1 if (3 <= s <= 33 or (s == 0 and r >= 1)) else 0
            for _ in range(nk): push(("K", k)); k += 1
            for _ in range(nv): push(("V", v)); v += 1
            if s == 33: push(("st", r))
            r2, s2 = (r, s + 1) if s < 33 else (r + 1, 0)
            need = set()
            if r2 < 2:
                if s2 == 0: need |= {("K", 32 * r2), ("K", 32 * r2 + 1)}
                elif s2 + 1 <= 31: need.add(("K", 32 * r2 + s2 + 1))
                if 0 <= s2 - 2 <= 31: need.add(("V", 32 * r2 + s2 - 2))
            w = allowed(need) if need else 63
            waits[s] = min(waits.get(s, 63), w, 63)
    return pro, pro_wait, waits

def helper(a):
    vXo = [2, 3, 4]; vWo = 5; vAa = 6; vQw = 7
    vAcc = 16; vA = 112; vX = 144
    lq = Q(a, "lgkmcnt", 15)
    a(f"""
    s_sub_u32 s{sT3}, s3, 4
    v_and_b32 v12, 15, v0
    v_lshrrev_b32 v13, 4, v0
    s_mul_i32 s{sT0}, s{sT3}, 48
    v_add_u32 v14, s{sT0}, v12
    v_mul_u32_u24 v{vXo[0]}, 1280, v14
    v_lshl_add_u32 v{vXo[0]}, v13, 4, v{vXo[0]}
    v_add_u32 v{vXo[1]}, 20480, v{vXo[0]}
    v_add_u32 v{vXo[2]}, 40960, v{vXo[0]}
    v_mul_u32_u24 v{vQw}, 272, v14
    v_lshl_add_u32 v{vQw}, v13, 3, v{vQw}
    v_add_u32 v{vQw}, {QB}, v{vQw}
    v_and_b32 v14, 1, v13
    v_lshlrev_b32 v{vWo}, 15, v14
    v_lshrrev_b32 v14, 1, v13
    v_lshl_add_u32 v{vWo}, v14, 17, v{vWo}
    v_lshl_add_u32 v{vWo}, v12, 4, v{vWo}
    v_bfe_u32 v12, v0, 2, 2
    v_and_b32 v15, 1, v13
    v_lshl_add_u32 v12, v15, 2, v12
    v_mul_u32_u24 v{vAa}, 1056, v12
    v_lshl_add_u32 v{vAa}, v14, 9, v{vAa}
    v_and_b32 v12, 3, v0
    v_lshl_add_u32 v{vAa}, v12, 3, v{vAa}
    v_add_u32 v{vAa}, {ST}, v{vAa}
    """)
    for j in range(3):
        a(f"""
        s_add_u32 s{sT0}, s{sT3}, {3 * j}
        s_min_u32 s{sT0}, s{sT0}, 7
        s_mul_i32 s{sWlds + j}, s{sT0}, 1056
        s_add_u32 s{sWlds + j}, s{sWlds + j}, {ST}
        s_and_b32 s{sT1}, s{sT0}, 3
        s_lshr_b32 s{sT2}, s{sT0}, 2
        s_lshl_b32 s{sT2}, s{sT2}, 3
        s_add_u32 s{sT1}, s{sT1}, s{sT2}
        s_lshl_b32 s{sWrow + j}, s{sT1}, 13
        """)
    a(f"s_mov_b32 s{sMode}, 0")
    stage = lambda s: (s + 2) % NS
    def issue(j):
        for i in range(3):
            a(f"s_add_u32 m0, s{sWlds + i}, {stage(j) * TILE}\ns_add_u32 s{sT0}, s{sWg}, s{sWrow + i}")
            a(f"buffer_load_dwordx4 v{vWo}, s[{SRD_WQ}:{SRD_WQ+3}], s{sT0} offen lds")
        for rt in range(3):
            a(f"buffer_load_dwordx4 {vr(vX + 12 * j + 4 * rt, 4)}, v{vXo[rt]}, s[{SRD_X}:{SRD_X+3}], s{sXk} offen")
        a(f"s_add_u32 s{sWg}, s{sWg}, {32 * 8192}\ns_add_u32 s{sXk}, s{sXk}, 64")
    def rdA(j, nt):
        for e in range(2):
            a(f"ds_read_b64_tr_b16 {vr(vA + 4 * nt + 2 * e, 2)}, v{vAa} offset:{stage(j) * TILE + e * 256 + nt * 32}")
            lq.push(("A", nt))
    def idle(lbl):
        a(f"s_cmp_eq_u32 s{sMode}, 0\ns_cbranch_scc1 {lbl}\ns_barrier")
        a.label(lbl)
    a.label("H_job")
    a(f"""
    s_lshl_b32 s{sT0}, s{sMode}, 4
    s_add_u32 s{sT0}, s{sT0}, s{sH0}
    s_lshl_b32 s{sWg}, s{sT0}, 8
    s_mov_b32 s{sXk}, 0
    """)
    for j in range(4): issue(j)
    for i in range(96): a(f"v_mov_b32 v{vAcc + i}, 0")
    a("s_waitcnt vmcnt(18)\ns_barrier")
    for nt in range(8): rdA(0, nt)
    a("s_waitcnt vmcnt(12)\ns_barrier")
    a(f"s_mov_b32 s{sIt}, 0")
    entry = list(lq.q)
    a.label("H_loop")
    for j in range(5):
        skip = a.newlabel("Hskip"); go = a.newlabel("Hgo")
        if j >= 1:
            a(f"s_cmp_eq_u32 s{sIt}, 3\ns_cbranch_scc1 {skip}")
        issue((j + 4) % 5)
        if j >= 1: a.label(skip)
        for nt in range(8):
            lq.need(("A", nt))
            for rt in range(3):
                D = vr(vAcc + 4 * (nt * 3 + rt), 4)
                a(f"v_mfma_f32_16x16x32_bf16 {D}, {vr(vA + 4 * nt, 4)}, {vr(vX + 12 * j + 4 * rt, 4)}, {D}")
            rdA((j + 1) % 5, nt)
        if j == 0:
            a("s_waitcnt vmcnt(12)")
        else:
            a(f"s_cmp_eq_u32 s{sIt}, 3\ns_cbranch_scc1 {go}_l\ns_waitcnt vmcnt(12)\ns_branch {go}")
            a.label(go + "_l")
            a(f"s_waitcnt vmcnt({6 if j == 1 else 0})")
            a.label(go)
        if j < 4:
            a("s_barrier")
            if j in (1, 3): idle(a.newlabel("Hidle"))
    assert lq.q == entry
    a(f"s_add_u32 s{sIt}, s{sIt}, 1\ns_cmp_eq_u32 s{sIt}, 4\ns_cbranch_scc1 H_fin\ns_barrier\ns_branch H_loop")
    a.label("H_fin")
    a(f"s_nop 7\ns_mov_b32 s{sT0}, {QSCALE_U:#x}")
    for nt in range(8):
        for rt in range(3):
            c = vAcc + 4 * (nt * 3 + rt)
            for i in range(4): a(f"v_mul_f32 v{c+i}, s{sT0}, v{c+i}")
            a(f"v_cvt_pk_bf16_f32 v{c}, v{c}, v{c+1}\nv_cvt_pk_bf16_f32 v{c+1}, v{c+2}, v{c+3}")
            a(f"ds_write_b64 v{vQw}, {vr(c,2)} offset:{rt * 16 * 272 + nt * 32}")
    a("s_waitcnt lgkmcnt(0)\ns_barrier")
    lq.q = []
    a(f"s_cmp_eq_u32 s{sMode}, 1\ns_cbranch_scc1 H_done")
    a(f"s_mov_b32 s{sMode}, 1\ns_barrier\ns_branch H_job")
    a.label("H_done")
    barrier_loop(a, 34 - 31 + 34, "H_rest")
    a("s_endpgm")

def gen_k1(nt=True):
    a = Asm()
    common_setup(a)
    a.label("L_main")
    m = Attn(a, True)
    m.setup()
    barrier_loop(a, NPRO, "M_pro")
    m.round_code()
    a.label("L_rem")
    r = Attn(a, False)
    ld = Loader(a, nt)
    r.setup(); ld.setup()
    pro, pro_wait, waits = loader_schedule()
    for c in pro:
        ld.issueK() if c == "K" else ld.issueV()
    barrier_loop(a, NPRO - 1, "R_pro")
    a(f"s_waitcnt vmcnt({min(pro_wait,55)})\ns_barrier")
    st = {"s": 0, "loop": False}
    def hook(kind):
        s = st["s"]
        if kind == "loop": st["loop"] = True
        elif kind == "endloop": st["loop"] = False; st["s"] = 32
        elif kind == "begin":
            if s == 0:
                l = a.newlabel("Rs0")
                a(f"s_cmp_eq_u32 s{sRound}, 0\ns_cbranch_scc1 {l}")
                ld.issueV(); a.label(l)
            elif st["loop"]:
                if s == 2:
                    l = a.newlabel("Rs2"); l2 = a.newlabel("Rs2")
                    ld.issueK()
                    a(f"s_cmp_eq_u32 s{sCnt}, 15\ns_cbranch_scc0 {l}")
                    ld.issueK()
                    a(f"s_branch {l2}")
                    a.label(l); ld.issueV(); a.label(l2)
                else:
                    ld.issueK(); ld.issueV()
            elif s == 32: ld.issueK(); ld.issueV()
            elif s == 33: ld.issueV()
        elif kind == "end":
            if st["loop"]:
                w = min(waits[x] for x in range(s, 32, 2))
            else: w = waits[s]
            a(f"s_waitcnt vmcnt({min(w, 55)})")
            st["s"] = s + 1
    r.hook = hook
    r.round_code()
    a.label("L_help")
    helper(a)
    a.label("L_end")
    a("s_endpgm")
    print("waits", pro_wait, waits, "main top", m.top, "rem top", r.top, file=sys.stderr)
    return a.text()

def gen_k2():
    a = Asm()
    SW, SO, SOUT = 4, 8, 12
    vXo, vWo, vAa, vR, vOut = 2, 3, 4, 5, 6
    vAcc = 16; vA = 112; vX = 144
    lq = Q(a, "lgkmcnt", 15)
    a(f"""
    s_cmp_ge_u32 s2, 240
    s_cbranch_scc1 K2_end
    s_load_dwordx2 s[56:57], s[0:1], 32
    s_load_dwordx2 s[58:59], s[0:1], 72
    s_load_dwordx2 s[60:61], s[0:1], 80
    s_load_dwordx2 s[62:63], s[0:1], 96
    v_lshrrev_b32 v1, 6, v0
    v_and_b32 v0, 63, v0
    v_readfirstlane_b32 s3, v1
    s_and_b32 s32, s2, 7
    s_lshr_b32 s33, s2, 3
    s_mul_i32 s34, s33, 52
    s_lshr_b32 s34, s34, 8            ; c/5
    s_mul_i32 s35, s34, 5
    s_sub_u32 s35, s33, s35           ; n5
    s_mul_i32 s36, s32, 6
    s_add_u32 s36, s36, s34           ; rowblock 0..47
    s_mul_i32 s37, s36, 86
    s_lshr_b32 s37, s37, 8
    s_mul_i32 s38, s37, 3
    s_sub_u32 s38, s36, s38           ; rb 0..2
    s_lshr_b32 s39, s37, 3            ; br
    s_waitcnt lgkmcnt(0)
    s_cmp_eq_u32 s39, 0
    s_cselect_b32 s56, s56, s58
    s_cselect_b32 s57, s57, s59
    """)
    srd(a, SW, 56, 57, 5242880)
    srd(a, SO, 62, 63, 2 * 8 * 32 * 36864)
    srd(a, SOUT, 60, 61, 8 * 144 * 1280 * 2)
    a(f"""
    v_and_b32 v12, 15, v0
    v_lshrrev_b32 v13, 4, v0
    s_mul_i32 s40, s38, 48
    v_add_u32 v14, s40, v12
    v_lshlrev_b32 v{vXo}, 5, v14
    v_and_b32 v15, 1, v13
    v_lshl_add_u32 v{vXo}, v15, 4, v{vXo}
    v_lshrrev_b32 v10, 1, v13
    v_mul_u32_u24 v11, 4608, v10
    v_add_u32 v{vXo}, v{vXo}, v11
    v_mul_u32_u24 v{vOut}, 2560, v14
    v_lshl_add_u32 v{vOut}, v13, 3, v{vOut}
    v_mul_u32_u24 v{vWo}, 5120, v15
    v_mul_u32_u24 v11, 20480, v10
    v_add_u32 v{vWo}, v{vWo}, v11
    v_lshl_add_u32 v{vWo}, v12, 4, v{vWo}
    v_bfe_u32 v12, v0, 2, 2
    v_lshl_add_u32 v12, v15, 2, v12
    v_mul_u32_u24 v{vAa}, 1056, v12
    v_lshl_add_u32 v{vAa}, v10, 9, v{vAa}
    v_and_b32 v12, 3, v0
    v_lshl_add_u32 v{vAa}, v12, 3, v{vAa}
    s_mul_i32 s41, s3, {2 * TILE}
    v_add_u32 v{vAa}, s41, v{vAa}
    v_lshlrev_b32 v{vR}, 4, v0
    s_mul_i32 s42, s37, {32 * 36864}
    s_mul_i32 s43, s3, {4 * 36864}
    s_add_u32 s42, s42, s43
    s_mul_i32 s43, s3, {512 * 1280}
    s_lshl_b32 s44, s35, 8
    s_add_u32 s43, s43, s44
    """)
    def issue(j):
        for i in range(8):
            rowb = (i & 3) + 8 * (i >> 2)
            a(f"s_add_u32 m0, s41, {j * TILE + i * 1056}\ns_add_u32 s45, s43, {rowb * 1280}")
            a(f"buffer_load_dwordx4 v{vWo}, s[{SW}:{SW+3}], s45 offen lds")
        for rt in range(3):
            a(f"buffer_load_dwordx4 {vr(vX + 12 * j + 4 * rt, 4)}, v{vXo}, s[{SO}:{SO+3}], s42 offen offset:{rt * 512}")
        a(f"s_add_u32 s43, s43, {32 * 1280}\ns_add_u32 s42, s42, 9216")
    issue(0); issue(1)
    for i in range(96): a(f"v_mov_b32 v{vAcc + i}, 0")
    a("s_mov_b32 s46, 0")
    a.label("K2_loop")
    for j in range(2):
        l1 = a.newlabel("K2s");
        if j == 0: a("s_waitcnt vmcnt(11)")
        else:
            a(f"s_cmp_eq_u32 s46, 7\ns_cbranch_scc1 {l1}_a\ns_waitcnt vmcnt(11)")
            a.label(l1 + "_a")
            a(f"s_cbranch_scc0 {l1}_b\ns_waitcnt vmcnt(0)")
            a.label(l1 + "_b")
        for nt in range(8):
            for e in range(2):
                a(f"ds_read_b64_tr_b16 {vr(vA + 4 * nt + 2 * e, 2)}, v{vAa} offset:{j * TILE + e * 256 + nt * 32}")
                lq.push(("A", nt))
        for nt in range(8):
            lq.need(("A", nt))
            for rt in range(3):
                D = vr(vAcc + 4 * (nt * 3 + rt), 4)
                a(f"v_mfma_f32_16x16x32_bf16 {D}, {vr(vA + 4 * nt, 4)}, {vr(vX + 12 * j + 4 * rt, 4)}, {D}")
        a(f"s_cmp_eq_u32 s46, 7\ns_cbranch_scc1 {l1}")
        issue(j)
        a.label(l1)
    a("s_add_u32 s46, s46, 1\ns_cmp_lt_u32 s46, 8\ns_cbranch_scc1 K2_loop")
    a("s_nop 7\ns_barrier")
    a(f"""
    s_lshl_b32 s47, s3, 13
    v_add_u32 v7, s47, v{vR}
    s_lshl_b32 s47, s3, 10
    v_add_u32 v8, s47, v{vR}
    v_add_u32 v9, 65536, v8
    s_mul_i32 s48, s37, {144 * 2560}
    s_and_b32 s48, s37, 7
    s_mul_i32 s48, s48, {144 * 2560}
    s_mul_i32 s49, s39, 1280
    s_add_u32 s48, s48, s49
    s_add_u32 s48, s48, s44
    s_lshl_b32 s49, s3, 5
    s_add_u32 s48, s48, s49
    v_add_u32 v11, 65536, v7
    """)
    for phase in ((0, 1), (2,)):
        for k, rt in enumerate(phase):
            for nt in range(8):
                a(f"ds_write_b128 v{7 if k == 0 else 11}, {vr(vAcc + 4 * (nt * 3 + rt), 4)} offset:{nt * 1024}")
        a("s_waitcnt lgkmcnt(0)\ns_barrier")
        for k, rt in enumerate(phase):
            base = vX + 32 * k
            for w in range(8):
                a(f"ds_read_b128 {vr(base + 4 * w, 4)}, v{8 if k == 0 else 9} offset:{w * 8192}")
        a("s_waitcnt lgkmcnt(0)")
        for k, rt in enumerate(phase):
            base = vX + 32 * k
            for w in range(1, 8):
                for i in range(4): a(f"v_add_f32 v{base+i}, v{base+i}, v{base+4*w+i}")
            a(f"v_cvt_pk_bf16_f32 v{base}, v{base}, v{base+1}\nv_cvt_pk_bf16_f32 v{base+1}, v{base+2}, v{base+3}")
            a(f"s_add_u32 s49, s48, {rt * 16 * 2560}")
            a(f"buffer_store_dwordx2 {vr(base,2)}, v{vOut}, s[{SOUT}:{SOUT+3}], s49 offen")
        if phase == (0, 1): a("s_barrier")
    a.label("K2_end")
    a("s_endpgm")
    return a.text()

if __name__ == "__main__":
    out = sys.argv[1] if len(sys.argv) > 1 else "s1.s"
    k1 = gen_k1(); k2 = gen_k2()
    txt = kernel_file([("attn_kernel", k1, 256, 102, 256), ("oproj_kernel", k2, 256, 102, 256)],
                      [("attn_kernel", 256, 512, LDS1), ("oproj_kernel", 240, 512, 16 * TILE)])
    open(out, "w").write(txt)
```
